```python
import torch

def _softmax(x, axis=-1):
    return torch.softmax(x, dim=axis)
def _gelu(x):
    return torch.nn.functional.gelu(x, approximate="tanh")
def _silu(x):
    return torch.nn.functional.silu(x)
def _sigmoid(x):
    return torch.sigmoid(x)
def _layernorm(x, axis=-1, eps=1e-5):
    m = x.mean(dim=axis, keepdim=True)
    v = x.var(dim=axis, keepdim=True, unbiased=False)
    return (x - m) / torch.sqrt(v + eps)
def _scatter_add(tgt, idx, src, axis=0):
    return tgt.clone().index_add_(axis, idx, src)
def _segment_sum(src, seg, n):
    out = torch.zeros((n,) + src.shape[1:], dtype=src.dtype)
    return out.index_add_(0, seg, src)
def _pad(x, pw):
    flat = tuple(v for pair in reversed(pw) for v in pair)
    return torch.nn.functional.pad(x, flat)

kernel_name = 'recurrent_scan__sliding_block__glu_gated_glu__prompt'

def setup_inputs():

    _w = (lambda a: (lambda t: t.to(torch.bfloat16) if t.is_floating_point() else t)(torch.as_tensor(a)))
    def _A_setup():
        B, S, D = 1, 2048, 512
        return {
            "x": _w((lambda *s: torch.randn(*s, dtype=torch.bfloat16) * 0.05)(B, S, D)),
            "wqkv": _w((lambda *s: torch.randn(*s, dtype=torch.bfloat16) * 0.05)(D, 3 * D)),
            "wo": _w((lambda *s: torch.randn(*s, dtype=torch.bfloat16) * 0.05)(D, D)),
        }
    _A_in = _A_setup()

    def _B_setup():
        B, S, D, F = 1, 2048, 512, 1792
        return {
            "x": _w((lambda *s: torch.randn(*s, dtype=torch.bfloat16) * 0.05)(B, S, D)),
            "w_gate": _w((lambda *s: torch.randn(*s, dtype=torch.bfloat16) * 0.05)(D, F)),
            "w_up": _w((lambda *s: torch.randn(*s, dtype=torch.bfloat16) * 0.05)(D, F)),
            "w_down": _w((lambda *s: torch.randn(*s, dtype=torch.bfloat16) * 0.05)(F, D)),
        }
    _B_in = _B_setup()

    return {
        "A_x": _A_in["x"],
        "A_wqkv": _A_in["wqkv"],
        "A_wo": _A_in["wo"],
        "B_x": _B_in["x"],
        "B_w_gate": _B_in["w_gate"],
        "B_w_up": _B_in["w_up"],
        "B_w_down": _B_in["w_down"],
    }

def reference(A_x, A_wqkv, A_wo, B_x, B_w_gate, B_w_up, B_w_down):
    def _A_ref(x, wqkv, wo):
        B, S, D = x.shape
        H = 32; Dh = D // H; W = 256
        qkv = (lambda x, *d: x.permute(*d))((x @ wqkv).reshape(B, S, 3, H, Dh), 2, 0, 3, 1, 4)
        q, k, v = qkv[0], qkv[1], qkv[2]
        scores = torch.einsum("bhqd,bhkd->bhqk", q, k) * (Dh ** -0.5)
        idx = torch.arange(S)
        mask = (idx[:, None] - idx[None, :] >= 0) & (idx[:, None] - idx[None, :] < W)
        scores = torch.where(mask[None, None], scores, -1e9)
        p = _softmax(scores, axis=-1)
        o = torch.einsum("bhqk,bhkd->bhqd", p, v)
        return (lambda x, *d: x.permute(*d))(o, 0, 2, 1, 3).reshape(B, S, D) @ wo

    def _B_ref(x, w_gate, w_up, w_down):
        g = torch.einsum("bsd,df->bsf", x, w_gate)
        u = torch.einsum("bsd,df->bsf", x, w_up)
        h = _sigmoid(g) * u
        return torch.einsum("bsf,fd->bsd", h, w_down)

    x = A_x
    xn = _layernorm(x, axis=-1)
    s = _A_ref(xn, A_wqkv, A_wo)
    g = _silu(_B_ref(xn, B_w_gate, B_w_up, B_w_down))
    return x + s * g
```

```python
class Asm:
    def __init__(self):
        self.lines = []
        self.nlabel = 0
    def __call__(self, s=""):
        for l in s.split("\n"):
            self.lines.append("    " + l.strip() if l.strip() and not l.strip().endswith(":") else l.strip())
    def label(self, name):
        self.lines.append(name + ":")
    def newlabel(self, p="L"):
        self.nlabel += 1
        return f"{p}_{self.nlabel}"
    def text(self):
        return "\n".join(self.lines) + "\n"

HEADER = """.amdgcn_target "amdgcn-amd-amdhsa--gfx950"
.text
"""
def kernel_begin(name):
    return f""".globl {name}
.p2align 8
.type {name},@function
{name}:
"""
def kernel_desc(name, vgpr, sgpr=102, accum=None, extra=""):
    if accum is None:
        accum = min(256, (vgpr + 3) // 4 * 4)
    return f""".amdhsa_kernel {name}
  .amdhsa_next_free_vgpr {vgpr}
  .amdhsa_next_free_sgpr {sgpr}
  .amdhsa_accum_offset {accum}
  .amdhsa_group_segment_fixed_size 0
  .amdhsa_kernarg_size 80
  .amdhsa_user_sgpr_count 2
  .amdhsa_user_sgpr_kernarg_segment_ptr 1
  .amdhsa_system_sgpr_workgroup_id_x 1
{extra}.end_amdhsa_kernel
"""
RODATA = """.section .rodata,"a"
.p2align 6
"""
```

```python
import re, sys
REG = re.compile(r'\b([vas])(\d+)\b|\b([vas])\[(\d+):(\d+)\]')
def regs(tok):
    out = set()
    for m in REG.finditer(tok):
        if m.group(1):
            out.add((m.group(1), int(m.group(2))))
        else:
            for i in range(int(m.group(4)), int(m.group(5)) + 1): out.add((m.group(3), i))
    if re.search(r'\bvcc\b', tok): out.add(('s', 'vcc'))
    if re.search(r'\bm0\b', tok): out.add(('s', 'm0'))
    if re.search(r'\bexec\b', tok): out.add(('s', 'exec'))
    return out
TRANS = ('v_exp_f32','v_log_f32','v_rcp_f32','v_rsq_f32','v_sqrt_f32','v_sin_f32','v_cos_f32')
class I:
    def __init__(s, text, ln):
        s.text = text; s.ln = ln
        t = text.split(None, 1); s.op = t[0]; ops = [o.strip() for o in (t[1] if len(t) > 1 else '').split(',')]
        s.ops = ops
        op = s.op
        s.mfma = op.startswith('v_mfma')
        s.valu = op.startswith('v_') and not s.mfma
        s.trans = op.replace('_e32','').replace('_e64','') in TRANS
        s.dot = op.startswith('v_dot')
        s.vmem = op.startswith(('buffer_', 'global_', 'flat_'))
        s.ds = op.startswith('ds_')
        s.salu = op.startswith('s_')
        s.dpp = 'row_' in text or 'quad_perm' in text or 'wave_' in text
        s.perm = op.startswith('v_permlane')
        s.w = set(); s.r = set(); s.srcC = set(); s.ab = set(); s.stdata = set()
        s.lds_dma = s.vmem and (' lds' in text or 'load_lds' in op)
        if s.mfma:
            s.w = regs(ops[0]); s.ab = regs(ops[1]) | regs(ops[2]); s.srcC = regs(ops[3]); s.r = s.ab | s.srcC
            s.passes = 8 if '32x32x16' in op else 4
        elif s.valu:
            if op.startswith('v_cmp'):
                s.w = regs(ops[0]); s.r = set().union(*[regs(o) for o in ops[1:]])
                if op.startswith('v_cmpx'): s.w.add(('s','exec'))
            elif s.perm:
                s.w = regs(ops[0]) | regs(ops[1]); s.r = set(s.w)
            elif op.startswith(('v_readfirstlane','v_readlane')):
                s.w = regs(ops[0]); s.r = set().union(*[regs(o) for o in ops[1:]])
            else:
                s.w = regs(ops[0]); rest = ops[1:]
                if '_co_' in op: s.w |= regs(ops[1]); rest = ops[2:]
                s.r = set().union(*[regs(o) for o in rest]) if rest else set()
                if op.startswith(('v_fmac','v_dot2c','v_writelane','v_mac')): s.r |= regs(ops[0])
                if op.startswith('v_cndmask') and len(ops) == 3: s.r.add(('s','vcc'))
        elif s.vmem:
            allr = set().union(*[regs(o) for o in ops])
            if 'store' in op or ('atomic' in op):
                s.r = allr
                if op.startswith('buffer_'): s.stdata = regs(ops[0])
                else: s.stdata = regs(ops[1])
                if 'atomic' in op and 'sc0' in text: s.w = regs(ops[0])
                s.wide = ('x3' in op or 'x4' in op)
            elif s.lds_dma:
                s.r = allr | {('s','m0')}
            else:
                s.w = regs(ops[0]); s.r = set().union(*[regs(o) for o in ops[1:]])
        elif s.ds:
            if op.startswith(('ds_read','ds_bpermute','ds_permute','ds_swizzle')):
                s.w = regs(ops[0]); s.r = set().union(*[regs(o) for o in ops[1:]])
            else:
                s.r = set().union(*[regs(o) for o in ops])
        elif s.salu:
            if op.startswith(('s_cmp','s_cbranch','s_branch','s_waitcnt','s_nop','s_barrier','s_endpgm','s_setprio','s_sleep','s_bitcmp')):
                s.r = set().union(*[regs(o) for o in ops]) if ops != [''] else set()
            else:
                s.w = regs(ops[0]); s.r = set().union(*[regs(o) for o in ops[1:]]) if len(ops) > 1 else set()
                if 'saveexec' in op: s.w.add(('s','exec'))
        s.ws = 1
        if op == 's_nop': s.ws = int(ops[0], 0) + 1
def need(p, c):
    n = 0
    vw = {x for x in p.w if x[0] in 'va'}
    if p.valu and not p.dot:
        if c.mfma and (vw & c.r): n = max(n, 2)
        if c.perm and (vw & c.r): n = max(n, 2)
        if c.valu and c.dpp and (vw & c.r): n = max(n, 2)
        if c.op.startswith(('v_readfirstlane','v_readlane')) and (vw & c.r): n = max(n, 1)
    if p.dot:
        if c.mfma and (vw & c.r): n = max(n, 3)
        if c.valu or c.vmem or c.ds:
            if (vw & (c.r | c.w)):
                same = (c.op == p.op)
                srcC_only = same and not (vw & (regs(c.ops[1]) | regs(c.ops[2])))
                if not srcC_only: n = max(n, 3)
    if p.trans and c.valu and not c.trans and (vw & c.r): n = max(n, 1)
    if p.trans and c.mfma and (vw & c.r): n = max(n, 2)
    if p.valu:
        sw = {x for x in p.w if x[0] == 's'}
        if sw:
            if c.vmem and (sw & c.r): n = max(n, 5)
            if c.valu and (sw & c.r): n = max(n, 4 if c.op.startswith(('v_readlane','v_writelane')) else 2)
            if ('s','exec') in sw:
                if c.mfma or c.perm or c.op.startswith(('v_readlane','v_readfirstlane','v_writelane')): n = max(n, 4)
                if c.dpp: n = max(n, 5)
            if c.salu and (sw & c.r): n = max(n, 1)
    if p.salu and ('s','m0') in p.w and (c.lds_dma or 'addtid' in c.op): n = max(n, 1)
    if p.vmem and p.stdata and getattr(p, 'wide', False):
        if (p.stdata & c.w): n = max(n, 2 if c.valu else 1)
    if p.mfma:
        big = {8: 12, 4: 8}[p.passes]; ovl = {8: 10, 4: 6}[p.passes]; war = {8: 7, 4: 3}[p.passes]
        if c.mfma:
            if p.w & c.ab: n = max(n, big)
            if p.w & c.srcC:
                if not (p.w == c.srcC and p.passes == c.passes): n = max(n, ovl)
            elif p.w & c.w: n = max(n, ovl)
        elif (c.valu or c.vmem or c.ds):
            if p.w & (c.r | c.w): n = max(n, big)
            if c.valu and (p.srcC & c.w): n = max(n, war)
    return n
def lint(text, verbose=True):
    ins = []; labels = {}
    for ln, raw in enumerate(text.split('\n'), 1):
        l = raw.split(';')[0].strip()
        if not l or l.startswith('.'): continue
        if l.endswith(':'): labels[l[:-1]] = len(ins); continue
        ins.append(I(l, ln))
    errs = []
    W = 24
    def succ(i):
        x = ins[i]
        if x.op == 's_endpgm': return []
        if x.op == 's_branch': return [labels[x.ops[0]]]
        if x.op.startswith('s_cbranch'): return [i + 1, labels[x.ops[0]]]
        return [i + 1] if i + 1 < len(ins) else []
    for i, p in enumerate(ins):
        if not (p.w or p.stdata or p.mfma): continue
        stack = [(j, 0) for j in succ(i)]; seen = set()
        while stack:
            j, d = stack.pop()
            if j >= len(ins) or (j, d) in seen: continue
            seen.add((j, d))
            c = ins[j]
            n = need(p, c)
            if n > d:
                errs.append(f"line {c.ln}: '{c.text}' needs {n} ws after line {p.ln}: '{p.text}' (has {d})")
            d2 = d + c.ws
            if d2 < 13:
                for k in succ(j): stack.append((k, d2))
    errs = sorted(set(errs))
    if verbose:
        for e in errs[:40]: print("HAZARD", e)
        print(f"lint: {len(ins)} instrs, {len(errs)} hazards")
    return errs
if __name__ == '__main__':
    lint(open(sys.argv[1]).read())
```

```python
from asmgen import *
import lint, sys

WS_Q = 0; WS_K = 2<<20; WS_V = 4<<20; WS_HO = 6<<20
HO_TB = 144*1024
WS_USED = WS_HO + 64*HO_TB
LOG2E = 1.4426950408889634
import struct
def f2u(f): return struct.unpack('<I', struct.pack('<f', f))[0]
def hx(f): return "0x%08x" % f2u(f)

def srd(a, d, lo, hi, nbytes):
    a(f"s_mov_b32 s{d}, s{lo}\ns_mov_b32 s{d+1}, s{hi}\ns_mov_b32 s{d+2}, {nbytes}\ns_mov_b32 s{d+3}, 0x20000")

def cost(ins):
    op = ins.split()[0]
    if op in lint.TRANS: return 8
    if op.startswith('buffer_'): return 12
    if op.startswith('s_'): return 1
    return 4

def spread(gaps, fillers, start=0, end=None):
    end = len(gaps) if end is None else end
    tot = sum(cost(f) for f in fillers); n = end - start
    acc = 0; k = 0
    for gi in range(n):
        target = tot * (gi + 1) / n
        while k < len(fillers) and (acc + cost(fillers[k]) / 2 <= target or gi == n - 1):
            gaps[start + gi].append(fillers[k]); acc += cost(fillers[k]); k += 1

NS = 9
NSTAGE = 28
XN = 128; ACCA = 0; ACCB = 64; AF = 96; NAF = 5
vA0, vA1, vL16, vVoff, vNegM, vSd, vRg, vRq = 116, 117, 118, 119, 120, 121, 122, 123
vT = 124
SCR = NS * 16384

def k1():
    a = Asm(); N = "k1"
    a(f"""s_cmp_ge_u32 s2, 256
    s_cbranch_scc1 {N}_end
    s_load_dwordx4 s[4:7], s[0:1], 0
    s_load_dwordx4 s[36:39], s[0:1], 32
    s_load_dwordx2 s[40:41], s[0:1], 72
    v_lshrrev_b32 v1, 6, v0
    v_and_b32 v2, 63, v0
    s_and_b32 s42, s2, 7          ; xcd
    v_readfirstlane_b32 s43, v1   ; wave
    s_lshr_b32 s44, s2, 3         ; j
    s_lshr_b32 s45, s42, 2        ; r
    s_and_b32 s46, s42, 3         ; c
    s_lshr_b32 s47, s44, 2        ; i
    s_and_b32 s48, s44, 3         ; role
    s_lshl_b32 s49, s45, 3
    s_add_u32 s49, s49, s47       ; rowblk
    s_lshl_b32 s50, s48, 1
    s_add_u32 s50, s50, s47
    s_and_b32 s50, s50, 7         ; rot
    s_mul_i32 s51, s46, 7         ; 7c
    s_lshl_b32 s52, s48, 1
    s_add_u32 s53, s51, s52       ; F_a = 7c+2role
    s_add_u32 s52, s52, 1
    s_min_u32 s52, s52, 6
    s_add_u32 s54, s51, s52       ; F_c
    s_cmp_ge_u32 s43, 4
    s_cbranch_scc1 {N}_loader
    """)
    a(f"""s_getpc_b64 s[56:57]
    v_lshlrev_b32 v3, 7, v0
    global_load_dword v127, v3, s[56:57]
    v_and_b32 v3, 31, v2          ; t
    v_lshrrev_b32 v4, 5, v2       ; hi
    v_lshrrev_b32 v5, 1, v3
    v_and_b32 v5, 7, v5           ; (t>>1)&7
    s_lshl_b32 s58, s43, 12
    v_lshlrev_b32 v6, 7, v3
    v_add_u32 v6, s58, v6
    """)
    for sp in range(4):
        a(f"""v_add_u32 v7, {2*sp}, v4
        v_xor_b32 v7, v7, v5
        v_lshl_add_u32 v{8+sp}, v7, 4, v6""")
    a(f"""v_and_b32 v12, 15, v2
    v_lshrrev_b32 v13, 2, v12
    v_lshl_add_u32 v13, v4, 3, v13
    v_lshlrev_b32 v13, 7, v13     ; row*128
    v_bfe_u32 v14, v2, 4, 1
    v_lshlrev_b32 v14, 5, v14
    v_and_b32 v15, 3, v2
    v_lshl_add_u32 v14, v15, 3, v14
    v_add_u32 v13, v13, v14
    v_bfe_u32 v15, v2, 3, 1
    v_lshl_add_u32 v{vA0}, v15, 6, v13
    v_xor_b32 v{vA1}, 64, v{vA0}
    v_lshlrev_b32 v{vL16}, 4, v2
    v_lshl_add_u32 v14, v4, 4, v12
    v_lshlrev_b32 v14, 4, v14
    v_bfe_u32 v15, v2, 4, 1
    v_lshl_add_u32 v{vVoff}, v15, 16, v14
    v_mov_b32 v16, 0
    v_mov_b32 v17, 0
    v_mov_b32 v18, 0
    v_mov_b32 v19, 0
    s_mov_b32 s60, 0x3f803f80
    s_mov_b32 s61, 0x00003f80
    s_mov_b32 s62, 0x3f800000
    s_waitcnt lgkmcnt(0)""")
    srd(a, 32, 40, 41, WS_USED)
    a(f"""s_lshl_b32 s63, s49, 2
    s_add_u32 s63, s63, s43        ; tb
    s_mul_i32 s64, s63, {HO_TB}
    s_add_u32 s64, s64, {WS_HO}
    s_lshl_b32 s65, s53, 12
    s_add_u32 s65, s65, s64
    s_lshl_b32 s66, s54, 12
    s_add_u32 s66, s66, s64
    s_lshl_b32 s67, s46, 3         ; 8c
    s_and_b32 s68, s48, 1
    s_lshl_b32 s68, s68, 2
    s_add_u32 s68, s68, s67        ; h0
    s_lshl_b32 s68, s68, 6
    s_add_u32 s68, s68, s63
    s_lshl_b32 s68, s68, 10
    s_lshr_b32 s69, s48, 1
    s_lshl_b32 s69, s69, 21
    s_add_u32 s68, s68, s69
    s_lshl_b32 s69, s67, 6
    s_add_u32 s69, s69, s63
    s_lshl_b32 s69, s69, 10
    s_add_u32 s69, s69, {WS_V}
    s_cmp_lt_u32 s48, 2
    s_cselect_b32 s70, {hx(0.25*LOG2E)}, 1.0
    """)
    def stats(s):
        out = []
        for fr in range(4*s, 4*s+4):
            for k in range(4):
                r = XN + 4*fr + k
                out.append(f"v_dot2_f32_bf16 v{16+(k&1)}, v{r}, s60, v{16+(k&1)}")
                out.append(f"v_dot2_f32_bf16 v{18+(k&1)}, v{r}, v{r}, v{18+(k&1)}")
        return out
    for s in range(8):
        a("s_barrier")
        if s == 4:
            for sp in range(4): a(f"v_add_u32 v{8+sp}, 0x10000, v{8+sp}")
        for sp in range(4):
            fr = 4*s + sp
            a(f"ds_read_b128 v[{XN+4*fr}:{XN+4*fr+3}], v{8+sp} offset:{(s%4)*16384}")
        if s > 0:
            a("s_waitcnt lgkmcnt(4)")
            for x in stats(s-1): a(x)
    a("s_waitcnt lgkmcnt(0)")
    for x in stats(7): a(x)
    a(f"""s_nop 2
    v_add_f32 v16, v16, v17
    v_add_f32 v18, v18, v19
    v_mov_b32 v17, v16
    v_mov_b32 v19, v18
    s_nop 1
    v_permlane32_swap_b32 v16, v17
    v_permlane32_swap_b32 v18, v19
    v_add_f32 v16, v16, v17
    v_add_f32 v18, v18, v19
    v_mul_f32 v16, {hx(1/512)}, v16       ; mean
    v_mul_f32 v18, {hx(1/512)}, v18
    v_fma_f32 v18, -v16, v16, v18         ; var
    v_max_f32 v18, 0, v18
    v_cvt_pk_bf16_f32 v16, v16, v18
    v_and_b32 v18, 0xffff0000, v16        ; bf16(var)
    v_lshlrev_b32 v16, 16, v16            ; bf16(mean)
    v_add_f32 v18, {hx(1e-5)}, v18
    v_sub_f32 v{vNegM}, 0, v16
    v_cvt_pk_bf16_f32 v18, v18, v18
    v_and_b32 v18, 0xffff0000, v18
    v_sqrt_f32 v18, v18
    s_nop 0
    v_cvt_pk_bf16_f32 v18, v18, v18
    v_and_b32 v{vSd}, 0xffff0000, v18
    v_rcp_f32 v18, v{vSd}
    v_lshlrev_b32 v17, 2, v3
    s_lshl_b32 s58, s43, 7
    s_add_u32 s58, s58, {SCR}
    v_add_u32 v17, s58, v17
    v_mul_f32 v{vRg}, {hx(-LOG2E)}, v18
    v_mul_f32 v{vRq}, s70, v18
    ds_write_b32 v17, v18
    s_waitcnt vmcnt(0)""")
    def norm(fr, tmp):
        out = []
        for k in range(4):
            r = XN + 4*fr + k
            out.append(f"v_dot2_f32_bf16 v{tmp+2*k}, v{r}, s61, v{vNegM}")
            out.append(f"v_dot2_f32_bf16 v{tmp+2*k+1}, v{r}, s62, v{vNegM}")
        for k in range(4):
            r = XN + 4*fr + k
            out.append(f"v_cvt_pk_bf16_f32 v{r}, v{tmp+2*k}, v{tmp+2*k+1}")
        return out
    for x in norm(0, ACCB): a(x)
    def pass4(g0, acc, swapped):
        L = []
        for n in range(32):
            g = g0 + n // 4
            for u in range(4):
                L.append(dict(g=g, off=(u >> 1) * 8192 + (n % 4) * 2048, H=u & 1, acc=acc + 16*u, xf=n, first=(n == 0), sw=swapped))
        return L
    def pass2(g0, acc):
        L = []
        for n in range(32):
            g = g0 + n // 8
            for u in range(2):
                L.append(dict(g=g, off=((n % 8) // 4) * 8192 + (n % 4) * 2048, H=u, acc=acc + 16*u, xf=n, first=(n == 0), sw=False))
        return L
    class St: pass
    def emit_reads(st, m, idx, out):
        if m['g'] > st.lastbar:
            out.append("s_barrier"); st.lastbar = m['g']
        slot = m['g'] % NS
        bank = (slot * 16384) >> 16
        if bank != st.bank:
            d = (bank - st.bank) * 65536
            out.append(f"v_add_u32 v{vA0}, {d & 0xffffffff}, v{vA0}"); out.append(f"v_add_u32 v{vA1}, {d & 0xffffffff}, v{vA1}")
            st.bank = bank
        o = slot * 16384 - bank * 65536 + m['off']
        f = AF + 4 * (idx % NAF); va = vA1 if m['H'] else vA0
        out.append(f"ds_read_b64_tr_b16 v[{f}:{f+1}], v{va} offset:{o}")
        out.append(f"ds_read_b64_tr_b16 v[{f+2}:{f+3}], v{va} offset:{o+512}")
    def build(st, L, i0, i1):
        gaps = []
        for i in range(i0, i1):
            m = L[i]; g = []
            nlater = min(len(L) - 1, i + NAF - 1) - i
            g.append(f"s_waitcnt lgkmcnt({2*nlater})")
            f = AF + 4 * (i % NAF); x = XN + 4*m['xf']; c = "0" if m['first'] else f"v[{m['acc']}:{m['acc']+15}]"
            if m['sw']: g.append(f"v_mfma_f32_32x32x16_bf16 v[{m['acc']}:{m['acc']+15}], v[{x}:{x+3}], v[{f}:{f+3}], {c}")
            else: g.append(f"v_mfma_f32_32x32x16_bf16 v[{m['acc']}:{m['acc']+15}], v[{f}:{f+3}], v[{x}:{x+3}], {c}")
            if i + NAF < len(L): emit_reads(st, L[i + NAF], i + NAF, g)
            gaps.append(g)
        return gaps
    def epi_dpair(acc, sbase):
        out = []
        for p in range(2):
            G = acc + 16*p; U = acc + 32 + 16*p
            for s in range(2):
                for q in range(2):
                    rs = range(8*s + 4*q, 8*s + 4*q + 4)
                    out += [f"v_mul_f32 v{G+r}, v{vRg}, v{G+r}" for r in rs]
                    out += [f"v_exp_f32 v{G+r}, v{G+r}" for r in rs]
                    out += [f"v_fma_f32 v{G+r}, v{G+r}, v{vSd}, v{vSd}" for r in rs]
                    out += [f"v_rcp_f32 v{G+r}, v{G+r}" for r in rs]
                    out += [f"v_mul_f32 v{U+r}, v{G+r}, v{U+r}" for r in rs]
                out += [f"v_cvt_pk_bf16_f32 v{G+8*s+j}, v{U+8*s+2*j}, v{U+8*s+2*j+1}" for j in range(4)]
                out.append(f"buffer_store_dwordx4 v[{G+8*s}:{G+8*s+3}], v{vL16}, s[32:35], s{sbase} offen offset:{(2*p+s)*1024}")
        return out
    def epi_qk(acc):
        out = []
        for H in range(2):
            A_ = acc + 16*H
            for e in range(2):
                rs = range(8*e, 8*e+8)
                out += [f"v_mul_f32 v{A_+r}, v{vRq}, v{A_+r}" for r in rs]
                out += [f"v_cvt_pk_bf16_f32 v{A_+8*e+j}, v{A_+8*e+2*j}, v{A_+8*e+2*j+1}" for j in range(4)]
                out.append(f"buffer_store_dwordx4 v[{A_+8*e}:{A_+8*e+3}], v{vL16}, s[32:35], s68 offen")
                out.append(f"s_add_u32 s68, s68, 65536")
        return out
    def emit(gaps):
        for g in gaps:
            for x in g: a(x)
    a(f"s_cmp_eq_u32 s48, 3\ns_cbranch_scc1 {N}_typeB")
    join_state = None
    for typ in ("A", "B"):
        if typ == "B": a.label(f"{N}_typeB")
        L = pass4(8, ACCA, typ == "B") + pass2(16, ACCB) + pass4(20, ACCA, False)
        st = St(); st.lastbar = 7; st.bank = 0
        pro = []
        for i in range(NAF): emit_reads(st, L[i], i, pro)
        for x in pro: a(x)
        ga = build(st, L, 0, 128)
        for n in range(31):
            spread(ga, norm(n + 1, ACCB + 8*(n & 1)), 4*n, 4*n + 3)
        emit(ga)
        gb = build(st, L, 128, 192)
        if typ == "A":
            spread(gb, epi_dpair(ACCA, 65), 0, 63)
        else:
            per = 15
            ga_tail = [f"v_lshrrev_b32 v{vNegM}, 9, v{vL16}", f"v_lshl_add_u32 v{vNegM}, v{vNegM}, 4, s58"]
            for x in ga_tail: a(x)
            for j in range(4):
                gi = j * per
                gb[gi].append(f"ds_read_b128 v[{vT}:{vT+3}], v{vNegM} offset:{32*j}")
                for k in range(1, NAF):
                    w = gb[gi + k][0]; nn = int(w[w.index('(')+1:-1]); gb[gi + k][0] = f"s_waitcnt lgkmcnt({nn+1})"
                fl = []
                for u in range(4):
                    fl += [f"v_mul_f32 v{ACCA+16*u+4*j+r}, v{vT+r}, v{ACCA+16*u+4*j+r}" for r in range(4)]
                if j & 1:
                    s = j >> 1
                    for u in range(4):
                        A_ = ACCA + 16*u + 8*s
                        fl += [f"v_cvt_pk_bf16_f32 v{A_+jj}, v{A_+2*jj}, v{A_+2*jj+1}" for jj in range(4)]
                        fl.append(f"s_add_u32 s71, s69, {u*131072}")
                        fl.append(f"buffer_store_dwordx4 v[{A_}:{A_+3}], v{vVoff}, s[32:35], s71 offen offset:{s*512}")
                spread(gb, fl, gi + NAF, gi + per)
        emit(gb)
        if typ == "A":
            a(f"s_branch {N}_join")
        join_state = st
    a.label(f"{N}_join")
    gc = build(join_state, L, 192, 320)
    spread(gc, epi_qk(ACCB), 2, 60)
    emit(gc)
    a("s_nop 7")
    for x in epi_dpair(ACCA, 66): a(x)
    a("s_endpgm")
    a.label(f"{N}_loader")
    a(f"""s_sub_u32 s43, s43, 4
    v_lshrrev_b32 v3, 3, v2
    v_and_b32 v4, 7, v2            ; chunk'
    v_lshrrev_b32 v5, 4, v2        ; lane>>4
    v_xor_b32 v6, v4, v5
    v_lshlrev_b32 v7, 10, v3
    v_lshl_add_u32 v8, v6, 4, v7
    v_xor_b32 v9, 64, v8
    v_and_b32 v5, 1, v5
    v_lshlrev_b32 v5, 2, v5
    v_xor_b32 v6, v4, v5
    v_lshlrev_b32 v6, 4, v6
    v_mul_u32_u24 v10, 3072, v3
    v_add_u32 v10, v10, v6
    v_mul_u32_u24 v11, 3584, v3
    v_add_u32 v11, v11, v6
    s_cmp_eq_u32 s48, 3
    s_cselect_b64 vcc, -1, 0
    s_movk_i32 s55, 3584
    s_cselect_b32 s55, 3072, s55
    s_nop 1
    v_cndmask_b32 v12, v11, v10, vcc
    s_waitcnt lgkmcnt(0)""")
    srd(a, 8, 4, 5, 2048*1024)
    srd(a, 20, 6, 7, 512*3072)
    srd(a, 24, 36, 37, 512*3584)
    srd(a, 28, 38, 39, 512*3584)
    a(f"""s_cmp_eq_u32 s48, 3
    s_cselect_b32 s12, s6, s36
    s_cselect_b32 s13, s7, s37
    s_cselect_b32 s14, {512*3072}, s26
    s_mov_b32 s15, 0x20000
    s_cselect_b32 s16, s6, s38
    s_cselect_b32 s17, s7, s39
    s_mov_b32 s18, s14
    s_mov_b32 s19, 0x20000
    s_lshl_b32 s58, s46, 8         ; 256c
    s_add_u32 s59, s58, 2048
    s_lshl_b32 s60, s53, 7
    s_cmp_eq_u32 s48, 3
    s_cselect_b32 s61, s59, s60    ; colA0
    s_add_u32 s59, s59, 128
    s_cmp_eq_u32 s48, 3
    s_cselect_b32 s62, s59, s60    ; colA1
    s_lshl_b32 s63, s43, 4         ; 16w
    s_mul_i32 s64, s63, s55
    s_add_u32 s61, s61, s64
    s_add_u32 s62, s62, s64        ; + 16w*stride
    s_lshr_b32 s64, s48, 1
    s_lshl_b32 s64, s64, 10
    s_add_u32 s64, s64, s58
    s_and_b32 s65, s48, 1
    s_lshl_b32 s65, s65, 7
    s_add_u32 s64, s64, s65
    s_mul_i32 s65, s63, 3072
    s_add_u32 s64, s64, s65        ; colB + 16w*3072
    s_lshl_b32 s65, s54, 7
    s_mul_i32 s66, s63, 3584
    s_add_u32 s65, s65, s66        ; colC + 16w*3584
    s_lshl_b32 s66, s49, 7
    s_add_u32 s66, s66, s63
    s_lshl_b32 s66, s66, 10        ; x: (rowblk*128+16w)*1024
    s_lshl_b32 s67, s43, 11
    s_lshl_b32 s68, s55, 6         ; 64*strideA
    s_lshl_b32 s69, s55, 3         ; 8*strideA
    """)
    def kb(j):
        a(f"s_add_u32 s70, s50, {j}\ns_and_b32 s70, s70, 7")
    def dma(slot, half, e, vo, sr, so):
        a(f"s_add_u32 m0, s67, {slot*16384 + half*8192 + e*1024}")
        a(so)
        a(f"buffer_load_dwordx4 v{vo}, s[{sr}:{sr+3}], s72 offen lds")
    def issue(g):
        slot = g % NS
        if g < 8:
            kb(g); a("s_lshl_b32 s71, s70, 7\ns_add_u32 s71, s71, s66")
            for half in range(2):
                for e in range(2):
                    dma(slot, half, e, 8 + e, 8, f"s_add_u32 s72, s71, {(half*64 + e*8)*1024}")
        elif g < 16:
            kb(g - 8); a("s_mul_i32 s71, s70, s68")
            for half in range(2):
                a(f"s_add_u32 s73, s71, s{61+half}")
                dma(slot, half, 0, 12, 12 + 4*half, "s_mov_b32 s72, s73")
                dma(slot, half, 1, 12, 12 + 4*half, "s_add_u32 s72, s73, s69")
        elif g < 20:
            for half in range(2):
                kb(2*(g - 16) + half); a(f"s_mul_i32 s71, s70, {64*3072}\ns_add_u32 s71, s71, s64")
                for e in range(2):
                    dma(slot, half, e, 10, 20, f"s_add_u32 s72, s71, {e*8*3072}")
        else:
            kb(g - 20); a(f"s_mul_i32 s71, s70, {64*3584}\ns_add_u32 s71, s71, s65")
            for half in range(2):
                for e in range(2):
                    dma(slot, half, e, 11, 24 + 4*half, f"s_add_u32 s72, s71, {e*8*3584}")
    issued = 0
    for g in range(NS): issue(g); issued += 1
    for g in range(NSTAGE):
        a(f"s_waitcnt vmcnt({4*(issued - (g+1))})")
        a("s_barrier")
        if g >= 2 and g - 2 + NS < NSTAGE:
            issue(g - 2 + NS); issued += 1
    a.label(f"{N}_end")
    a("s_endpgm")
    return a.text()


NEGINF = "0xff800000"
def k2():
    a = Asm(); N = "k2"
    Q = 0; K = 8; V = 48; S0 = 128; S1 = 144; O = 160; NM = 176; MD = 192; MO = 208
    vM, vL, vVo, vT0 = 224, 225, 226, 227
    a(f"""s_cmp_ge_u32 s2, 256
    s_cbranch_scc1 {N}_end
    s_load_dwordx2 s[40:41], s[0:1], 72
    v_lshrrev_b32 v1, 6, v0
    v_and_b32 v2, 63, v0
    s_and_b32 s42, s2, 7          ; xcd
    v_readfirstlane_b32 s43, v1   ; wave
    s_lshr_b32 s44, s2, 3         ; j 0..31
    s_lshr_b32 s45, s42, 2        ; r
    s_and_b32 s46, s42, 3         ; c
    s_lshl_b32 s47, s45, 4
    s_lshr_b32 s48, s44, 1
    s_add_u32 s47, s47, s48       ; tb2
    s_lshl_b32 s48, s46, 1
    s_and_b32 s49, s44, 1
    s_add_u32 s48, s48, s49       ; hq
    s_lshl_b32 s48, s48, 2
    s_add_u32 s48, s48, s43       ; head
    s_lshl_b32 s49, s47, 1        ; tbA
    s_lshl_b32 s50, s48, 16       ; head*64*1024
    s_lshl_b32 s51, s49, 10
    s_add_u32 s51, s51, s50
    s_sub_i32 s52, 8, s49
    s_max_i32 s52, s52, 0         ; u0
    v_lshlrev_b32 v{vL}, 4, v2
    v_and_b32 v3, 15, v2
    v_lshrrev_b32 v4, 5, v2       ; hi
    v_lshl_add_u32 v3, v4, 4, v3
    v_lshlrev_b32 v{vVo}, 4, v3
    v_and_b32 v5, 31, v2          ; q
    v_lshlrev_b32 v6, 2, v4
    v_sub_u32 v{vT0}, v5, v6      ; q - 4hi
    s_waitcnt lgkmcnt(0)""")
    srd(a, 32, 40, 41, WS_USED)
    a(f"""buffer_load_dwordx4 v[{Q}:{Q+3}], v{vL}, s[32:35], s51 offen
    buffer_load_dwordx4 v[{Q+4}:{Q+7}], v{vL}, s[32:35], s51 offen offset:1024""")
    for u in range(10):
        a(f"""s_add_i32 s53, s49, {u-8}
        s_max_i32 s53, s53, 0
        s_lshl_b32 s53, s53, 10
        s_add_u32 s53, s53, s50
        s_add_u32 s{60+u}, s53, {WS_V}
        s_add_u32 s53, s53, {WS_K}
        buffer_load_dwordx4 v[{K+4*u}:{K+4*u+3}], v{vL}, s[32:35], s53 offen""")
    for r in range(V, V+80): a(f"v_mov_b32 v{r}, 0x3f803f80")
    a("s_mov_b32 exec_lo, 0x0000ffff\ns_mov_b32 exec_hi, 0x0000ffff")
    for u in range(10):
        for s in range(2):
            a(f"buffer_load_dwordx4 v[{V+8*u+4*s}:{V+8*u+4*s+3}], v{vVo}, s[32:35], s{60+u} offen offset:{512*s}")
    a("s_mov_b64 exec, -1")
    a(f"v_mov_b32 v{vM}, {NEGINF}")
    for r in range(16):
        kc = 8*(r >> 2) + (r & 3)
        a(f"v_cmp_le_i32 vcc, {kc}, v{vT0}\ns_nop 1\nv_cndmask_b32 v{MD+r}, v{vM}, 0, vcc\nv_cndmask_b32 v{MO+r}, 0, v{vM}, vcc".replace(f"v_cndmask_b32 v{MD+r}, v{vM}, 0, vcc", f"v_cndmask_b32_e64 v{MD+r}, v{vM}, 0, vcc"))
    def mf(d, aa, b, c): return f"v_mfma_f32_32x32x16_bf16 v[{d}:{d+15}], v[{aa}:{aa+3}], v[{b}:{b+3}], {c}"
    def rg(x): return f"v[{x}:{x+15}]"
    for blk in range(2):
        q = Q + 4*blk; B = f"{N}_b{blk}"
        entries = [0, 2, 4, 6, 8] if blk == 0 else [0, 1, 3, 5, 7]
        u0s = [0, 2, 4, 6, 8]
        if blk == 0: a("s_waitcnt vmcnt(20)")
        bufs = [S0, S1, O]
        def c1(i): return rg(MO) if i == 0 else (rg(MD) if i == 8 else "0")
        def s1(i): return mf(bufs[i % 3], K + 4*(i + blk), q, c1(i))
        a(f"v_mov_b32 v{vM}, {NEGINF}")
        for e, u0 in list(zip(entries, u0s))[1:]:
            a(f"s_cmp_eq_u32 s52, {u0}\ns_cbranch_scc1 {B}_p1e{e}")
        a(s1(0)); a(s1(1)); a("s_nop 9")
        for i in range(9):
            a.label(f"{B}_p1_{i}")
            if i + 2 <= 8: a(s1(i + 2))
            else: a("s_nop 3")
            b = bufs[i % 3]
            for k in range(8): a(f"v_max3_f32 v{vM}, v{b+2*k}, v{b+2*k+1}, v{vM}")
        a(f"""v_mov_b32 v{vT0+1}, v{vM}
        s_nop 1
        v_permlane32_swap_b32 v{vM}, v{vT0+1}
        v_max_f32 v{vM}, v{vM}, v{vT0+1}""")
        for r in range(16): a(f"v_sub_f32 v{NM+r}, 0, v{vM}")
        for r in range(16): a(f"v_mov_b32 v{O+r}, 0")
        if blk == 0: a("s_waitcnt vmcnt(0)")
        sb = [S0, S1]
        def s2(i):
            b = sb[i & 1]
            if i == 0 or i == 8:
                m = MO if i == 0 else MD
                return [f"v_sub_f32 v{b+r}, v{m+r}, v{vM}" for r in range(16)] + ["s_nop 1", mf(b, K + 4*(i + blk), q, rg(b))]
            return [mf(b, K + 4*(i + blk), q, rg(NM))]
        for e, u0 in list(zip(entries, u0s))[1:]:
            a(f"s_cmp_eq_u32 s52, {u0}\ns_cbranch_scc1 {B}_p2e{e}")
        for x in s2(0): a(x)
        a("s_nop 11")
        for i in range(9):
            a.label(f"{B}_p2_{i}")
            b = sb[i & 1]; vv = V + 8*(i + blk)
            for r in range(2): a(f"v_exp_f32 v{b+r}, v{b+r}")
            if i + 1 <= 8:
                for x in s2(i + 1): a(x)
            for r in range(2, 8): a(f"v_exp_f32 v{b+r}, v{b+r}")
            for j in range(4):
                a(f"v_exp_f32 v{b+8+j}, v{b+8+j}")
                a(f"v_cvt_pk_bf16_f32 v{b+j}, v{b+2*j}, v{b+2*j+1}")
            for r in range(12, 16): a(f"v_exp_f32 v{b+r}, v{b+r}")
            a(mf(O, vv, b, rg(O)))
            for j in range(4): a(f"v_cvt_pk_bf16_f32 v{b+4+j}, v{b+8+2*j}, v{b+8+2*j+1}")
            a("s_nop 1")
            a(mf(O, vv + 4, b + 4, rg(O)))
        a(f"""s_nop 11
        v_rcp_f32 v{vT0+1}, v{O+8}
        s_add_u32 s53, s49, {blk}
        s_mul_i32 s53, s53, {HO_TB}
        s_lshl_b32 s54, s48, 10
        s_add_u32 s53, s53, s54
        s_add_u32 s53, s53, {WS_HO + 112*1024}""")
        for r in range(8): a(f"v_mul_f32 v{O+r}, v{vT0+1}, v{O+r}")
        for j in range(4): a(f"v_cvt_pk_bf16_f32 v{NM+j}, v{O+2*j}, v{O+2*j+1}")
        a(f"buffer_store_dwordx4 v[{NM}:{NM+3}], v{vL}, s[32:35], s53 offen")
        a(f"s_branch {B}_done")
        for e in entries[1:]:
            a.label(f"{B}_p1e{e}")
            a(s1(e))
            if e + 1 <= 8: a(s1(e + 1))
            a(f"s_nop 10\ns_branch {B}_p1_{e}")
            a.label(f"{B}_p2e{e}")
            for x in s2(e): a(x)
            a(f"s_nop 11\ns_branch {B}_p2_{e}")
        a.label(f"{B}_done")
    a.label(f"{N}_end")
    a("s_endpgm")
    return a.text()

K3_D = 6
def k3():
    a = Asm(); N = "k3"; D = K3_D
    AD = 0; AS = 64; BF = 128; AFR = BF + 8*D
    vL, vWo, vA0_, vA1_ = AFR + 16, AFR + 17, AFR + 18, AFR + 19
    PST = 1088
    a(f"""s_cmp_ge_u32 s2, 256
    s_cbranch_scc1 {N}_end
    s_load_dwordx2 s[4:5], s[0:1], 0
    s_load_dwordx2 s[6:7], s[0:1], 16
    s_load_dwordx4 s[36:39], s[0:1], 48
    s_load_dwordx2 s[40:41], s[0:1], 72
    v_lshrrev_b32 v1, 6, v0
    v_and_b32 v2, 63, v0
    s_and_b32 s42, s2, 7          ; xcd
    v_readfirstlane_b32 s43, v1   ; wave
    s_lshr_b32 s44, s2, 3         ; j
    s_lshl_b32 s47, s42, 2
    s_lshr_b32 s48, s44, 3
    s_add_u32 s47, s47, s48       ; tb2
    s_and_b32 s48, s44, 7         ; cb
    v_lshlrev_b32 v{vL}, 4, v2
    v_lshrrev_b32 v3, 3, v2
    v_and_b32 v4, 7, v2
    v_bfe_u32 v5, v2, 4, 1
    v_lshlrev_b32 v5, 2, v5
    v_xor_b32 v4, v4, v5
    v_lshlrev_b32 v4, 4, v4
    v_lshl_add_u32 v{vWo}, v3, 10, v4
    v_lshrrev_b32 v4, 5, v2       ; hi
    v_and_b32 v12, 15, v2
    v_lshrrev_b32 v13, 2, v12
    v_lshl_add_u32 v13, v4, 2, v13
    v_lshlrev_b32 v13, 7, v13
    v_bfe_u32 v14, v2, 4, 1
    v_lshlrev_b32 v14, 5, v14
    v_and_b32 v15, 3, v2
    v_lshl_add_u32 v14, v15, 3, v14
    v_add_u32 v13, v13, v14
    v_bfe_u32 v15, v2, 3, 1
    v_lshl_add_u32 v{vA0_}, v15, 6, v13
    s_mul_i32 s49, s43, {D*2048}
    v_add_u32 v{vA0_}, s49, v{vA0_}
    v_xor_b32 v{vA1_}, 64, v{vA0_}
    s_waitcnt lgkmcnt(0)""")
    srd(a, 8, 4, 5, 2048*1024)
    srd(a, 12, 6, 7, 512*1024)
    srd(a, 16, 36, 37, 1792*1024)
    srd(a, 20, 38, 39, 2048*1024)
    srd(a, 32, 40, 41, WS_USED)
    a(f"""s_lshl_b32 s50, s47, 1
    s_mul_i32 s50, s50, {HO_TB}
    s_add_u32 s50, s50, {WS_HO}
    s_mul_i32 s51, s43, {28*1024}
    s_add_u32 s51, s51, s50
    s_mul_i32 s52, s43, {8*1024}
    s_add_u32 s52, s52, s50
    s_add_u32 s52, s52, {112*1024}         ; o frags
    s_lshl_b32 s53, s48, 7
    s_mul_i32 s54, s43, {28*16*1024}
    s_add_u32 s54, s54, s53
    s_mul_i32 s55, s43, {8*16*1024}
    s_add_u32 s55, s55, s53
    """)
    NSTEP = 36
    def issue(n):
        sl = n % D
        if n < 28: sb, sw, sr, k = 51, 54, 16, n
        else: sb, sw, sr, k = 52, 55, 12, n - 28
        a(f"s_add_u32 m0, s49, {sl*2048}\ns_add_u32 s56, s{sw}, {k*16384}")
        a(f"buffer_load_dwordx4 v{vWo}, s[{sr}:{sr+3}], s56 offen lds")
        a(f"s_add_u32 m0, s49, {sl*2048+1024}\ns_add_u32 s56, s{sw}, {k*16384+8192}")
        a(f"buffer_load_dwordx4 v{vWo}, s[{sr}:{sr+3}], s56 offen lds")
        a(f"s_add_u32 s56, s{sb}, {k*1024}")
        a(f"buffer_load_dwordx4 v[{BF+8*sl}:{BF+8*sl+3}], v{vL}, s[32:35], s56 offen")
        a(f"s_add_u32 s56, s{sb}, {k*1024+HO_TB}")
        a(f"buffer_load_dwordx4 v[{BF+8*sl+4}:{BF+8*sl+7}], v{vL}, s[32:35], s56 offen")
    def reads(n):
        sl = n % D; f = AFR + 8*(n & 1)
        for H in range(2):
            va = vA1_ if H else vA0_
            a(f"ds_read_b64_tr_b16 v[{f+4*H}:{f+4*H+1}], v{va} offset:{sl*2048}")
            a(f"ds_read_b64_tr_b16 v[{f+4*H+2}:{f+4*H+3}], v{va} offset:{sl*2048+1024}")
    for n in range(D): issue(n)
    issued = D
    a(f"s_waitcnt vmcnt({4*(issued-1)})")
    reads(0)
    for n in range(NSTEP):
        if n + 1 < NSTEP:
            a(f"s_waitcnt vmcnt({4*(issued-(n+2))})")
            reads(n + 1)
            a("s_waitcnt lgkmcnt(4)")
        else:
            a("s_waitcnt lgkmcnt(0)")
        sl = n % D; f = AFR + 8*(n & 1); acc = AD if n < 28 else AS
        first = n in (0, 28)
        for th in range(2):
            for H in range(2):
                d = acc + 16*(2*th + H); c = "0" if first else f"v[{d}:{d+15}]"
                a(f"v_mfma_f32_32x32x16_bf16 v[{d}:{d+15}], v[{f+4*H}:{f+4*H+3}], v[{BF+8*sl+4*th}:{BF+8*sl+4*th+3}], {c}")
        if issued < NSTEP:
            issue(issued); issued += 1
    a(f"""s_barrier
    s_mul_i32 s56, s43, {16*PST}
    v_add_u32 v{vA0_}, s56, v{vL}
    v_add_u32 v{vA1_}, {64*PST}, v{vA0_}
    s_nop 7""")
    for q in range(16): a(f"ds_write_b128 v{vA0_}, v[{AD+4*q}:{AD+4*q+3}] offset:{q*PST}")
    for q in range(16): a(f"ds_write_b128 v{vA1_}, v[{AS+4*q}:{AS+4*q+3}] offset:{q*PST}")
    a(f"""v_lshrrev_b32 v128, 7, v{vL}           ; l>>3
    s_lshl_b32 s56, s43, 4
    v_add_u32 v128, s56, v128              ; t (it=0)
    v_bfe_u32 v129, v{vL}, 4, 3            ; g
    s_lshl_b32 s57, s47, 6
    v_add_u32 v130, s57, v128
    v_lshlrev_b32 v130, 10, v130
    v_lshl_add_u32 v130, v129, 4, v130
    v_add_u32 v130, s53, v130
    buffer_load_dwordx4 v[132:135], v130, s[8:11], 0 offen
    v_add_u32 v131, 8192, v130
    buffer_load_dwordx4 v[136:139], v131, s[8:11], 0 offen
    v_lshrrev_b32 v140, 5, v128            ; th
    v_lshl_add_u32 v140, v140, 3, v129
    v_mul_u32_u24 v140, {PST}, v140
    v_and_b32 v141, 31, v128
    v_lshl_add_u32 v140, v141, 4, v140
    v_add_u32 v141, {64*PST}, v140
    s_waitcnt lgkmcnt(0)
    s_barrier""")
    for it in range(2):
        for ai, va in enumerate((140, 141)):
            for w in range(4):
                for h in range(2):
                    dst = ai*32 + w*8 + h*4
                    a(f"ds_read_b128 v[{dst}:{dst+3}], v{va} offset:{w*16*PST + h*512 + it*128}")
        a("s_waitcnt lgkmcnt(8)")
        for r in range(8):
            a(f"v_add_f32 v{r}, v{r}, v{8+r}\nv_add_f32 v{16+r}, v{16+r}, v{24+r}")
        for r in range(8): a(f"v_add_f32 v{r}, v{r}, v{16+r}")
        for r in range(8): a(f"v_mul_f32 v{8+r}, {hx(-LOG2E)}, v{r}")
        for r in range(8): a(f"v_exp_f32 v{8+r}, v{8+r}")
        for r in range(8): a(f"v_add_f32 v{8+r}, 1.0, v{8+r}")
        for r in range(8): a(f"v_rcp_f32 v{8+r}, v{8+r}")
        for r in range(8): a(f"v_mul_f32 v{r}, v{8+r}, v{r}")
        a("s_waitcnt lgkmcnt(0)")
        for r in range(8):
            a(f"v_add_f32 v{32+r}, v{32+r}, v{40+r}\nv_add_f32 v{48+r}, v{48+r}, v{56+r}")
        for r in range(8): a(f"v_add_f32 v{32+r}, v{32+r}, v{48+r}")
        a(f"s_waitcnt vmcnt({1-it if it == 0 else 1})")
        xr = 132 + 4*it
        for j in range(4):
            a(f"v_lshlrev_b32 v{8+2*j}, 16, v{xr+j}\nv_and_b32 v{9+2*j}, 0xffff0000, v{xr+j}")
        for r in range(8): a(f"v_fma_f32 v{r}, v{r}, v{32+r}, v{8+r}")
        for j in range(4): a(f"v_cvt_pk_bf16_f32 v{144+4*it+j}, v{2*j}, v{2*j+1}")
        a(f"buffer_store_dwordx4 v[{144+4*it}:{147+4*it}], v{130+it}, s[20:23], 0 offen")
    a.label(f"{N}_end")
    a("s_endpgm")
    return a.text()

def build(path):
    hdr = open("recurrent_scan__sliding_block__glu_gated_glu__prompt.s.ref").read().split("; Override launch")[0]
    ks = [("k1_kernel", k1(), 512, NS*16384 + 512, 256), ("k2_kernel", k2(), 256, 0, 232), ("k3_kernel", k3(), 256, 128*1088, 128 + 8*K3_D + 20)]
    txt = hdr
    for n, t, blk, lds, vg in ks: txt += f"; @launch kernel={n} grid=(256,1,1) block=({blk},1,1) lds={lds}\n"
    txt += HEADER
    for n, t, blk, lds, vg in ks:
        lint.lint(t); txt += kernel_begin(n) + t
    txt += ".fill 2048, 4, 0xbf800000\n"
    txt += RODATA
    for n, t, blk, lds, vg in ks: txt += ".p2align 6\n" + kernel_desc(n, vg)
    open(path, "w").write(txt)

if __name__ == "__main__":
    build(sys.argv[1] if len(sys.argv) > 1 else "v1.s")
```

```python
from asmgen import *
import lint, sys

WS_Q = 0; WS_K = 2<<20; WS_V = 4<<20; WS_HO = 6<<20
HO_TB = 144*1024
WS_USED = WS_HO + 64*HO_TB
LOG2E = 1.4426950408889634
import struct
def f2u(f): return struct.unpack('<I', struct.pack('<f', f))[0]
def hx(f): return "0x%08x" % f2u(f)

def srd(a, d, lo, hi, nbytes):
    a(f"s_mov_b32 s{d}, s{lo}\ns_mov_b32 s{d+1}, s{hi}\ns_mov_b32 s{d+2}, {nbytes}\ns_mov_b32 s{d+3}, 0x20000")

def cost(ins):
    op = ins.split()[0]
    if op in lint.TRANS: return 8
    if op.startswith('buffer_'): return 12
    if op.startswith('s_'): return 1
    return 4

def spread(gaps, fillers, start=0, end=None):
    end = len(gaps) if end is None else end
    tot = sum(cost(f) for f in fillers); n = end - start
    acc = 0; k = 0
    for gi in range(n):
        target = tot * (gi + 1) / n
        while k < len(fillers) and (acc + cost(fillers[k]) / 2 <= target or gi == n - 1):
            gaps[start + gi].append(fillers[k]); acc += cost(fillers[k]); k += 1

NS = 9
NSTAGE = 28
XN = 128; ACCA = 0; ACCB = 64; AF = 96; NAF = 5
vA0, vA1, vL16, vVoff, vNegM, vSd, vRg, vRq = 116, 117, 118, 119, 120, 121, 122, 123
vT = 124
SCR = NS * 16384

def k1():
    a = Asm(); N = "k1"
    a(f"""s_cmp_ge_u32 s2, 256
    s_cbranch_scc1 {N}_end
    s_load_dwordx4 s[4:7], s[0:1], 0
    s_load_dwordx4 s[36:39], s[0:1], 32
    s_load_dwordx2 s[40:41], s[0:1], 72
    v_lshrrev_b32 v1, 6, v0
    v_and_b32 v2, 63, v0
    s_and_b32 s42, s2, 7          ; xcd
    v_readfirstlane_b32 s43, v1   ; wave
    s_lshr_b32 s44, s2, 3         ; j
    s_lshr_b32 s45, s42, 2        ; r
    s_and_b32 s46, s42, 3         ; c
    s_lshr_b32 s47, s44, 2        ; i
    s_and_b32 s48, s44, 3         ; role
    s_lshl_b32 s49, s45, 3
    s_add_u32 s49, s49, s47       ; rowblk
    s_lshl_b32 s50, s48, 1
    s_add_u32 s50, s50, s47
    s_and_b32 s50, s50, 7         ; rot
    s_mul_i32 s51, s46, 7         ; 7c
    s_lshl_b32 s52, s48, 1
    s_add_u32 s53, s51, s52       ; F_a = 7c+2role
    s_add_u32 s52, s52, 1
    s_min_u32 s52, s52, 6
    s_add_u32 s54, s51, s52       ; F_c
    s_cmp_ge_u32 s43, 4
    s_cbranch_scc1 {N}_loader
    """)
    a(f"""s_getpc_b64 s[56:57]
    v_lshlrev_b32 v3, 7, v0
    global_load_dword v127, v3, s[56:57]
    v_and_b32 v3, 31, v2          ; t
    v_lshrrev_b32 v4, 5, v2       ; hi
    v_lshrrev_b32 v5, 1, v3
    v_and_b32 v5, 7, v5           ; (t>>1)&7
    s_lshl_b32 s58, s43, 12
    v_lshlrev_b32 v6, 7, v3
    v_add_u32 v6, s58, v6
    """)
    for sp in range(4):
        a(f"""v_add_u32 v7, {2*sp}, v4
        v_xor_b32 v7, v7, v5
        v_lshl_add_u32 v{8+sp}, v7, 4, v6""")
    a(f"""v_and_b32 v12, 15, v2
    v_lshrrev_b32 v13, 2, v12
    v_lshl_add_u32 v13, v4, 3, v13
    v_lshlrev_b32 v13, 7, v13     ; row*128
    v_bfe_u32 v14, v2, 4, 1
    v_lshlrev_b32 v14, 5, v14
    v_and_b32 v15, 3, v2
    v_lshl_add_u32 v14, v15, 3, v14
    v_add_u32 v13, v13, v14
    v_bfe_u32 v15, v2, 3, 1
    v_lshl_add_u32 v{vA0}, v15, 6, v13
    v_xor_b32 v{vA1}, 64, v{vA0}
    v_lshlrev_b32 v{vL16}, 4, v2
    v_lshl_add_u32 v14, v4, 4, v12
    v_lshlrev_b32 v14, 4, v14
    v_bfe_u32 v15, v2, 4, 1
    v_lshl_add_u32 v{vVoff}, v15, 16, v14
    v_mov_b32 v16, 0
    v_mov_b32 v17, 0
    v_mov_b32 v18, 0
    v_mov_b32 v19, 0
    s_mov_b32 s60, 0x3f803f80
    s_mov_b32 s61, 0x00003f80
    s_mov_b32 s62, 0x3f800000
    s_waitcnt lgkmcnt(0)""")
    srd(a, 32, 40, 41, WS_USED)
    a(f"""s_lshl_b32 s63, s49, 2
    s_add_u32 s63, s63, s43        ; tb
    s_mul_i32 s64, s63, {HO_TB}
    s_add_u32 s64, s64, {WS_HO}
    s_lshl_b32 s65, s53, 12
    s_add_u32 s65, s65, s64
    s_lshl_b32 s66, s54, 12
    s_add_u32 s66, s66, s64
    s_lshl_b32 s67, s46, 3         ; 8c
    s_and_b32 s68, s48, 1
    s_lshl_b32 s68, s68, 2
    s_add_u32 s68, s68, s67        ; h0
    s_lshl_b32 s68, s68, 6
    s_add_u32 s68, s68, s63
    s_lshl_b32 s68, s68, 10
    s_lshr_b32 s69, s48, 1
    s_lshl_b32 s69, s69, 21
    s_add_u32 s68, s68, s69
    s_lshl_b32 s69, s67, 6
    s_add_u32 s69, s69, s63
    s_lshl_b32 s69, s69, 10
    s_add_u32 s69, s69, {WS_V}
    s_cmp_lt_u32 s48, 2
    s_cselect_b32 s70, {hx(0.25*LOG2E)}, 1.0
    """)
    def stats(s):
        out = []
        for fr in range(4*s, 4*s+4):
            for k in range(4):
                r = XN + 4*fr + k
                out.append(f"v_dot2_f32_bf16 v{16+(k&1)}, v{r}, s60, v{16+(k&1)}")
                out.append(f"v_dot2_f32_bf16 v{18+(k&1)}, v{r}, v{r}, v{18+(k&1)}")
        return out
    a(";@mark 3")
    for s in range(8):
        a("s_barrier")
        if s == 0: a(";@mark 4")
        if s == 7: a(";@mark 5")
        if s == 4:
            for sp in range(4): a(f"v_add_u32 v{8+sp}, 0x10000, v{8+sp}")
        for sp in range(4):
            fr = 4*s + sp
            a(f"ds_read_b128 v[{XN+4*fr}:{XN+4*fr+3}], v{8+sp} offset:{(s%4)*16384}")
        if s > 0:
            a("s_waitcnt lgkmcnt(4)")
            for x in stats(s-1): a(x)
    a("s_waitcnt lgkmcnt(0)")
    for x in stats(7): a(x)
    a(f"""s_nop 2
    v_add_f32 v16, v16, v17
    v_add_f32 v18, v18, v19
    v_mov_b32 v17, v16
    v_mov_b32 v19, v18
    s_nop 1
    v_permlane32_swap_b32 v16, v17
    v_permlane32_swap_b32 v18, v19
    v_add_f32 v16, v16, v17
    v_add_f32 v18, v18, v19
    v_mul_f32 v16, {hx(1/512)}, v16       ; mean
    v_mul_f32 v18, {hx(1/512)}, v18
    v_fma_f32 v18, -v16, v16, v18         ; var
    v_max_f32 v18, 0, v18
    v_cvt_pk_bf16_f32 v16, v16, v18
    v_and_b32 v18, 0xffff0000, v16        ; bf16(var)
    v_lshlrev_b32 v16, 16, v16            ; bf16(mean)
    v_add_f32 v18, {hx(1e-5)}, v18
    v_sub_f32 v{vNegM}, 0, v16
    v_cvt_pk_bf16_f32 v18, v18, v18
    v_and_b32 v18, 0xffff0000, v18
    v_sqrt_f32 v18, v18
    s_nop 0
    v_cvt_pk_bf16_f32 v18, v18, v18
    v_and_b32 v{vSd}, 0xffff0000, v18
    v_rcp_f32 v18, v{vSd}
    v_lshlrev_b32 v17, 2, v3
    s_lshl_b32 s58, s43, 7
    s_add_u32 s58, s58, {SCR}
    v_add_u32 v17, s58, v17
    v_mul_f32 v{vRg}, {hx(-LOG2E)}, v18
    v_mul_f32 v{vRq}, s70, v18
    ds_write_b32 v17, v18
    s_waitcnt vmcnt(0)""")
    def norm(fr, tmp):
        out = []
        for k in range(4):
            r = XN + 4*fr + k
            out.append(f"v_dot2_f32_bf16 v{tmp+2*k}, v{r}, s61, v{vNegM}")
            out.append(f"v_dot2_f32_bf16 v{tmp+2*k+1}, v{r}, s62, v{vNegM}")
        for k in range(4):
            r = XN + 4*fr + k
            out.append(f"v_cvt_pk_bf16_f32 v{r}, v{tmp+2*k}, v{tmp+2*k+1}")
        return out
    for x in norm(0, ACCB): a(x)
    a(";@mark 6")
    def pass4(g0, acc, swapped):
        L = []
        for n in range(32):
            g = g0 + n // 4
            for u in range(4):
                L.append(dict(g=g, off=(u >> 1) * 8192 + (n % 4) * 2048, H=u & 1, acc=acc + 16*u, xf=n, first=(n == 0), sw=swapped))
        return L
    def pass2(g0, acc):
        L = []
        for n in range(32):
            g = g0 + n // 8
            for u in range(2):
                L.append(dict(g=g, off=((n % 8) // 4) * 8192 + (n % 4) * 2048, H=u, acc=acc + 16*u, xf=n, first=(n == 0), sw=False))
        return L
    class St: pass
    def emit_reads(st, m, idx, out):
        if m['g'] > st.lastbar:
            out.append("s_barrier"); st.lastbar = m['g']
        slot = m['g'] % NS
        bank = (slot * 16384) >> 16
        if bank != st.bank:
            d = (bank - st.bank) * 65536
            out.append(f"v_add_u32 v{vA0}, {d & 0xffffffff}, v{vA0}"); out.append(f"v_add_u32 v{vA1}, {d & 0xffffffff}, v{vA1}")
            st.bank = bank
        o = slot * 16384 - bank * 65536 + m['off']
        f = AF + 4 * (idx % NAF); va = vA1 if m['H'] else vA0
        out.append(f"ds_read_b64_tr_b16 v[{f}:{f+1}], v{va} offset:{o}")
        out.append(f"ds_read_b64_tr_b16 v[{f+2}:{f+3}], v{va} offset:{o+512}")
    def build(st, L, i0, i1):
        gaps = []
        for i in range(i0, i1):
            m = L[i]; g = []
            nlater = min(len(L) - 1, i + NAF - 1) - i
            g.append(f"s_waitcnt lgkmcnt({2*nlater})")
            f = AF + 4 * (i % NAF); x = XN + 4*m['xf']; c = "0" if m['first'] else f"v[{m['acc']}:{m['acc']+15}]"
            if m['sw']: g.append(f"v_mfma_f32_32x32x16_bf16 v[{m['acc']}:{m['acc']+15}], v[{x}:{x+3}], v[{f}:{f+3}], {c}")
            else: g.append(f"v_mfma_f32_32x32x16_bf16 v[{m['acc']}:{m['acc']+15}], v[{f}:{f+3}], v[{x}:{x+3}], {c}")
            if i + NAF < len(L): emit_reads(st, L[i + NAF], i + NAF, g)
            gaps.append(g)
        return gaps
    def epi_dpair(acc, sbase):
        out = []
        for p in range(2):
            G = acc + 16*p; U = acc + 32 + 16*p
            for s in range(2):
                for q in range(2):
                    rs = range(8*s + 4*q, 8*s + 4*q + 4)
                    out += [f"v_mul_f32 v{G+r}, v{vRg}, v{G+r}" for r in rs]
                    out += [f"v_exp_f32 v{G+r}, v{G+r}" for r in rs]
                    out += [f"v_fma_f32 v{G+r}, v{G+r}, v{vSd}, v{vSd}" for r in rs]
                    out += [f"v_rcp_f32 v{G+r}, v{G+r}" for r in rs]
                    out += [f"v_mul_f32 v{U+r}, v{G+r}, v{U+r}" for r in rs]
                out += [f"v_cvt_pk_bf16_f32 v{G+8*s+j}, v{U+8*s+2*j}, v{U+8*s+2*j+1}" for j in range(4)]
                out.append(f"buffer_store_dwordx4 v[{G+8*s}:{G+8*s+3}], v{vL16}, s[32:35], s{sbase} offen offset:{(2*p+s)*1024}")
        return out
    def epi_qk(acc):
        out = []
        for H in range(2):
            A_ = acc + 16*H
            for e in range(2):
                rs = range(8*e, 8*e+8)
                out += [f"v_mul_f32 v{A_+r}, v{vRq}, v{A_+r}" for r in rs]
                out += [f"v_cvt_pk_bf16_f32 v{A_+8*e+j}, v{A_+8*e+2*j}, v{A_+8*e+2*j+1}" for j in range(4)]
                out.append(f"buffer_store_dwordx4 v[{A_+8*e}:{A_+8*e+3}], v{vL16}, s[32:35], s68 offen")
                out.append(f"s_add_u32 s68, s68, 65536")
        return out
    def emit(gaps):
        for g in gaps:
            for x in g: a(x)
    a(f"s_cmp_eq_u32 s48, 3\ns_cbranch_scc1 {N}_typeB")
    join_state = None
    for typ in ("A", "B"):
        if typ == "B": a.label(f"{N}_typeB")
        L = pass4(8, ACCA, typ == "B") + pass2(16, ACCB) + pass4(20, ACCA, False)
        st = St(); st.lastbar = 7; st.bank = 0
        pro = []
        for i in range(NAF): emit_reads(st, L[i], i, pro)
        for x in pro: a(x)
        ga = build(st, L, 0, 128)
        for n in range(31):
            spread(ga, norm(n + 1, ACCB + 8*(n & 1)), 4*n, 4*n + 3)
        emit(ga)
        a(";@mark 7")
        gb = build(st, L, 128, 192)
        if typ == "A":
            spread(gb, epi_dpair(ACCA, 65), 0, 63)
        else:
            per = 15
            ga_tail = [f"v_lshrrev_b32 v{vNegM}, 9, v{vL16}", f"v_lshl_add_u32 v{vNegM}, v{vNegM}, 4, s58"]
            for x in ga_tail: a(x)
            for j in range(4):
                gi = j * per
                gb[gi].append(f"ds_read_b128 v[{vT}:{vT+3}], v{vNegM} offset:{32*j}")
                for k in range(1, NAF):
                    w = gb[gi + k][0]; nn = int(w[w.index('(')+1:-1]); gb[gi + k][0] = f"s_waitcnt lgkmcnt({nn+1})"
                fl = []
                for u in range(4):
                    fl += [f"v_mul_f32 v{ACCA+16*u+4*j+r}, v{vT+r}, v{ACCA+16*u+4*j+r}" for r in range(4)]
                if j & 1:
                    s = j >> 1
                    for u in range(4):
                        A_ = ACCA + 16*u + 8*s
                        fl += [f"v_cvt_pk_bf16_f32 v{A_+jj}, v{A_+2*jj}, v{A_+2*jj+1}" for jj in range(4)]
                        fl.append(f"s_add_u32 s71, s69, {u*131072}")
                        fl.append(f"buffer_store_dwordx4 v[{A_}:{A_+3}], v{vVoff}, s[32:35], s71 offen offset:{s*512}")
                spread(gb, fl, gi + NAF, gi + per)
        emit(gb)
        if typ == "A":
            a(f"s_branch {N}_join")
        join_state = st
    a.label(f"{N}_join")
    a(";@mark 8")
    gc = build(join_state, L, 192, 320)
    spread(gc, epi_qk(ACCB), 2, 60)
    emit(gc)
    a(";@mark 9")
    a("s_nop 7")
    for x in epi_dpair(ACCA, 66): a(x)
    a(";@mark 10")
    a("s_endpgm")
    a.label(f"{N}_loader")
    a(f"""s_sub_u32 s43, s43, 4
    v_lshrrev_b32 v3, 3, v2
    v_and_b32 v4, 7, v2            ; chunk'
    v_lshrrev_b32 v5, 4, v2        ; lane>>4
    v_xor_b32 v6, v4, v5
    v_lshlrev_b32 v7, 10, v3
    v_lshl_add_u32 v8, v6, 4, v7
    v_xor_b32 v9, 64, v8
    v_and_b32 v5, 1, v5
    v_lshlrev_b32 v5, 2, v5
    v_xor_b32 v6, v4, v5
    v_lshlrev_b32 v6, 4, v6
    v_mul_u32_u24 v10, 3072, v3
    v_add_u32 v10, v10, v6
    v_mul_u32_u24 v11, 3584, v3
    v_add_u32 v11, v11, v6
    s_cmp_eq_u32 s48, 3
    s_cselect_b64 vcc, -1, 0
    s_movk_i32 s55, 3584
    s_cselect_b32 s55, 3072, s55
    s_nop 1
    v_cndmask_b32 v12, v11, v10, vcc
    s_waitcnt lgkmcnt(0)""")
    srd(a, 8, 4, 5, 2048*1024)
    srd(a, 20, 6, 7, 512*3072)
    srd(a, 24, 36, 37, 512*3584)
    srd(a, 28, 38, 39, 512*3584)
    a(f"""s_cmp_eq_u32 s48, 3
    s_cselect_b32 s12, s6, s36
    s_cselect_b32 s13, s7, s37
    s_cselect_b32 s14, {512*3072}, s26
    s_mov_b32 s15, 0x20000
    s_cselect_b32 s16, s6, s38
    s_cselect_b32 s17, s7, s39
    s_mov_b32 s18, s14
    s_mov_b32 s19, 0x20000
    s_lshl_b32 s58, s46, 8         ; 256c
    s_add_u32 s59, s58, 2048
    s_lshl_b32 s60, s53, 7
    s_cmp_eq_u32 s48, 3
    s_cselect_b32 s61, s59, s60    ; colA0
    s_add_u32 s59, s59, 128
    s_cmp_eq_u32 s48, 3
    s_cselect_b32 s62, s59, s60    ; colA1
    s_lshl_b32 s63, s43, 4         ; 16w
    s_mul_i32 s64, s63, s55
    s_add_u32 s61, s61, s64
    s_add_u32 s62, s62, s64        ; + 16w*stride
    s_lshr_b32 s64, s48, 1
    s_lshl_b32 s64, s64, 10
    s_add_u32 s64, s64, s58
    s_and_b32 s65, s48, 1
    s_lshl_b32 s65, s65, 7
    s_add_u32 s64, s64, s65
    s_mul_i32 s65, s63, 3072
    s_add_u32 s64, s64, s65        ; colB + 16w*3072
    s_lshl_b32 s65, s54, 7
    s_mul_i32 s66, s63, 3584
    s_add_u32 s65, s65, s66        ; colC + 16w*3584
    s_lshl_b32 s66, s49, 7
    s_add_u32 s66, s66, s63
    s_lshl_b32 s66, s66, 10        ; x: (rowblk*128+16w)*1024
    s_lshl_b32 s67, s43, 11
    s_lshl_b32 s68, s55, 6         ; 64*strideA
    s_lshl_b32 s69, s55, 3         ; 8*strideA
    """)
    def kb(j):
        a(f"s_add_u32 s70, s50, {j}\ns_and_b32 s70, s70, 7")
    def dma(slot, half, e, vo, sr, so):
        a(f"s_add_u32 m0, s67, {slot*16384 + half*8192 + e*1024}")
        a(so)
        a(f"buffer_load_dwordx4 v{vo}, s[{sr}:{sr+3}], s72 offen lds")
    def issue(g):
        slot = g % NS
        if g < 8:
            kb(g); a("s_lshl_b32 s71, s70, 7\ns_add_u32 s71, s71, s66")
            for half in range(2):
                for e in range(2):
                    dma(slot, half, e, 8 + e, 8, f"s_add_u32 s72, s71, {(half*64 + e*8)*1024}")
        elif g < 16:
            kb(g - 8); a("s_mul_i32 s71, s70, s68")
            for half in range(2):
                a(f"s_add_u32 s73, s71, s{61+half}")
                dma(slot, half, 0, 12, 12 + 4*half, "s_mov_b32 s72, s73")
                dma(slot, half, 1, 12, 12 + 4*half, "s_add_u32 s72, s73, s69")
        elif g < 20:
            for half in range(2):
                kb(2*(g - 16) + half); a(f"s_mul_i32 s71, s70, {64*3072}\ns_add_u32 s71, s71, s64")
                for e in range(2):
                    dma(slot, half, e, 10, 20, f"s_add_u32 s72, s71, {e*8*3072}")
        else:
            kb(g - 20); a(f"s_mul_i32 s71, s70, {64*3584}\ns_add_u32 s71, s71, s65")
            for half in range(2):
                for e in range(2):
                    dma(slot, half, e, 11, 24 + 4*half, f"s_add_u32 s72, s71, {e*8*3584}")
    issued = 0
    a(";@mark 3")
    for g in range(NS): issue(g); issued += 1
    a(";@mark 4")
    for g in range(NSTAGE):
        a(f"s_waitcnt vmcnt({4*(issued - (g+1))})")
        a("s_barrier")
        if g >= 2 and g - 2 + NS < NSTAGE:
            issue(g - 2 + NS); issued += 1
    a.label(f"{N}_end")
    a("s_endpgm")
    return a.text()


NEGINF = "0xff800000"
def k2():
    a = Asm(); N = "k2"
    Q = 0; K = 8; V = 48; S0 = 128; S1 = 144; O = 160; NM = 176; MD = 192; MO = 208
    vM, vL, vVo, vT0 = 224, 225, 226, 227
    a(f"""s_cmp_ge_u32 s2, 256
    s_cbranch_scc1 {N}_end
    s_load_dwordx2 s[40:41], s[0:1], 72
    v_lshrrev_b32 v1, 6, v0
    v_and_b32 v2, 63, v0
    s_and_b32 s42, s2, 7          ; xcd
    v_readfirstlane_b32 s43, v1   ; wave
    s_lshr_b32 s44, s2, 3         ; j 0..31
    s_lshr_b32 s45, s42, 2        ; r
    s_and_b32 s46, s42, 3         ; c
    s_lshl_b32 s47, s45, 4
    s_lshr_b32 s48, s44, 1
    s_add_u32 s47, s47, s48       ; tb2
    s_lshl_b32 s48, s46, 1
    s_and_b32 s49, s44, 1
    s_add_u32 s48, s48, s49       ; hq
    s_lshl_b32 s48, s48, 2
    s_add_u32 s48, s48, s43       ; head
    s_lshl_b32 s49, s47, 1        ; tbA
    s_lshl_b32 s50, s48, 16       ; head*64*1024
    s_lshl_b32 s51, s49, 10
    s_add_u32 s51, s51, s50
    s_sub_i32 s52, 8, s49
    s_max_i32 s52, s52, 0         ; u0
    v_lshlrev_b32 v{vL}, 4, v2
    v_and_b32 v3, 15, v2
    v_lshrrev_b32 v4, 5, v2       ; hi
    v_lshl_add_u32 v3, v4, 4, v3
    v_lshlrev_b32 v{vVo}, 4, v3
    v_and_b32 v5, 31, v2          ; q
    v_lshlrev_b32 v6, 2, v4
    v_sub_u32 v{vT0}, v5, v6      ; q - 4hi
    s_waitcnt lgkmcnt(0)""")
    srd(a, 32, 40, 41, WS_USED)
    a(f"""buffer_load_dwordx4 v[{Q}:{Q+3}], v{vL}, s[32:35], s51 offen
    buffer_load_dwordx4 v[{Q+4}:{Q+7}], v{vL}, s[32:35], s51 offen offset:1024""")
    for u in range(10):
        a(f"""s_add_i32 s53, s49, {u-8}
        s_max_i32 s53, s53, 0
        s_lshl_b32 s53, s53, 10
        s_add_u32 s53, s53, s50
        s_add_u32 s{60+u}, s53, {WS_V}
        s_add_u32 s53, s53, {WS_K}
        buffer_load_dwordx4 v[{K+4*u}:{K+4*u+3}], v{vL}, s[32:35], s53 offen""")
    for r in range(V, V+80): a(f"v_mov_b32 v{r}, 0x3f803f80")
    a("s_mov_b32 exec_lo, 0x0000ffff\ns_mov_b32 exec_hi, 0x0000ffff")
    for u in range(10):
        for s in range(2):
            a(f"buffer_load_dwordx4 v[{V+8*u+4*s}:{V+8*u+4*s+3}], v{vVo}, s[32:35], s{60+u} offen offset:{512*s}")
    a("s_mov_b64 exec, -1")
    a(f"v_mov_b32 v{vM}, {NEGINF}")
    for r in range(16):
        kc = 8*(r >> 2) + (r & 3)
        a(f"v_cmp_le_i32 vcc, {kc}, v{vT0}\ns_nop 1\nv_cndmask_b32 v{MD+r}, v{vM}, 0, vcc\nv_cndmask_b32 v{MO+r}, 0, v{vM}, vcc".replace(f"v_cndmask_b32 v{MD+r}, v{vM}, 0, vcc", f"v_cndmask_b32_e64 v{MD+r}, v{vM}, 0, vcc"))
    def mf(d, aa, b, c): return f"v_mfma_f32_32x32x16_bf16 v[{d}:{d+15}], v[{aa}:{aa+3}], v[{b}:{b+3}], {c}"
    def rg(x): return f"v[{x}:{x+15}]"
    for blk in range(2):
        q = Q + 4*blk; B = f"{N}_b{blk}"
        entries = [0, 2, 4, 6, 8] if blk == 0 else [0, 1, 3, 5, 7]
        u0s = [0, 2, 4, 6, 8]
        if blk == 0: a(";@mark 3\ns_waitcnt vmcnt(20)\n;@mark 4")
        bufs = [S0, S1, O]
        def c1(i): return rg(MO) if i == 0 else (rg(MD) if i == 8 else "0")
        def s1(i): return mf(bufs[i % 3], K + 4*(i + blk), q, c1(i))
        a(f"v_mov_b32 v{vM}, {NEGINF}")
        for e, u0 in list(zip(entries, u0s))[1:]:
            a(f"s_cmp_eq_u32 s52, {u0}\ns_cbranch_scc1 {B}_p1e{e}")
        a(s1(0)); a(s1(1)); a("s_nop 9")
        for i in range(9):
            a.label(f"{B}_p1_{i}")
            if i + 2 <= 8: a(s1(i + 2))
            else: a("s_nop 3")
            b = bufs[i % 3]
            for k in range(8): a(f"v_max3_f32 v{vM}, v{b+2*k}, v{b+2*k+1}, v{vM}")
        a(f"""v_mov_b32 v{vT0+1}, v{vM}
        s_nop 1
        v_permlane32_swap_b32 v{vM}, v{vT0+1}
        v_max_f32 v{vM}, v{vM}, v{vT0+1}""")
        for r in range(16): a(f"v_sub_f32 v{NM+r}, 0, v{vM}")
        for r in range(16): a(f"v_mov_b32 v{O+r}, 0")
        if blk == 0: a(";@mark 5\ns_waitcnt vmcnt(0)\n;@mark 6")
        sb = [S0, S1]
        def s2(i):
            b = sb[i & 1]
            if i == 0 or i == 8:
                m = MO if i == 0 else MD
                return [f"v_sub_f32 v{b+r}, v{m+r}, v{vM}" for r in range(16)] + ["s_nop 1", mf(b, K + 4*(i + blk), q, rg(b))]
            return [mf(b, K + 4*(i + blk), q, rg(NM))]
        for e, u0 in list(zip(entries, u0s))[1:]:
            a(f"s_cmp_eq_u32 s52, {u0}\ns_cbranch_scc1 {B}_p2e{e}")
        for x in s2(0): a(x)
        a("s_nop 11")
        for i in range(9):
            a.label(f"{B}_p2_{i}")
            b = sb[i & 1]; vv = V + 8*(i + blk)
            for r in range(2): a(f"v_exp_f32 v{b+r}, v{b+r}")
            if i + 1 <= 8:
                for x in s2(i + 1): a(x)
            for r in range(2, 8): a(f"v_exp_f32 v{b+r}, v{b+r}")
            for j in range(4):
                a(f"v_exp_f32 v{b+8+j}, v{b+8+j}")
                a(f"v_cvt_pk_bf16_f32 v{b+j}, v{b+2*j}, v{b+2*j+1}")
            for r in range(12, 16): a(f"v_exp_f32 v{b+r}, v{b+r}")
            a(mf(O, vv, b, rg(O)))
            for j in range(4): a(f"v_cvt_pk_bf16_f32 v{b+4+j}, v{b+8+2*j}, v{b+8+2*j+1}")
            a("s_nop 1")
            a(mf(O, vv + 4, b + 4, rg(O)))
        a(f"""s_nop 11
        v_rcp_f32 v{vT0+1}, v{O+8}
        s_add_u32 s53, s49, {blk}
        s_mul_i32 s53, s53, {HO_TB}
        s_lshl_b32 s54, s48, 10
        s_add_u32 s53, s53, s54
        s_add_u32 s53, s53, {WS_HO + 112*1024}""")
        for r in range(8): a(f"v_mul_f32 v{O+r}, v{vT0+1}, v{O+r}")
        for j in range(4): a(f"v_cvt_pk_bf16_f32 v{NM+j}, v{O+2*j}, v{O+2*j+1}")
        a(f"buffer_store_dwordx4 v[{NM}:{NM+3}], v{vL}, s[32:35], s53 offen")
        a(f"s_branch {B}_done")
        for e in entries[1:]:
            a.label(f"{B}_p1e{e}")
            a(s1(e))
            if e + 1 <= 8: a(s1(e + 1))
            a(f"s_nop 10\ns_branch {B}_p1_{e}")
            a.label(f"{B}_p2e{e}")
            for x in s2(e): a(x)
            a(f"s_nop 11\ns_branch {B}_p2_{e}")
        a.label(f"{B}_done")
    a.label(f"{N}_end")
    a("s_endpgm")
    return a.text()

K3_D = 6
def k3():
    a = Asm(); N = "k3"; D = K3_D
    AD = 0; AS = 64; BF = 128; AFR = BF + 8*D
    vL, vWo, vA0_, vA1_ = AFR + 16, AFR + 17, AFR + 18, AFR + 19
    PST = 1088
    a(f"""s_cmp_ge_u32 s2, 256
    s_cbranch_scc1 {N}_end
    s_load_dwordx2 s[4:5], s[0:1], 0
    s_load_dwordx2 s[6:7], s[0:1], 16
    s_load_dwordx4 s[36:39], s[0:1], 48
    s_load_dwordx2 s[40:41], s[0:1], 72
    v_lshrrev_b32 v1, 6, v0
    v_and_b32 v2, 63, v0
    s_and_b32 s42, s2, 7          ; xcd
    v_readfirstlane_b32 s43, v1   ; wave
    s_lshr_b32 s44, s2, 3         ; j
    s_lshl_b32 s47, s42, 2
    s_lshr_b32 s48, s44, 3
    s_add_u32 s47, s47, s48       ; tb2
    s_and_b32 s48, s44, 7         ; cb
    v_lshlrev_b32 v{vL}, 4, v2
    v_lshrrev_b32 v3, 3, v2
    v_and_b32 v4, 7, v2
    v_bfe_u32 v5, v2, 4, 1
    v_lshlrev_b32 v5, 2, v5
    v_xor_b32 v4, v4, v5
    v_lshlrev_b32 v4, 4, v4
    v_lshl_add_u32 v{vWo}, v3, 10, v4
    v_lshrrev_b32 v4, 5, v2       ; hi
    v_and_b32 v12, 15, v2
    v_lshrrev_b32 v13, 2, v12
    v_lshl_add_u32 v13, v4, 2, v13
    v_lshlrev_b32 v13, 7, v13
    v_bfe_u32 v14, v2, 4, 1
    v_lshlrev_b32 v14, 5, v14
    v_and_b32 v15, 3, v2
    v_lshl_add_u32 v14, v15, 3, v14
    v_add_u32 v13, v13, v14
    v_bfe_u32 v15, v2, 3, 1
    v_lshl_add_u32 v{vA0_}, v15, 6, v13
    s_mul_i32 s49, s43, {D*2048}
    v_add_u32 v{vA0_}, s49, v{vA0_}
    v_xor_b32 v{vA1_}, 64, v{vA0_}
    s_waitcnt lgkmcnt(0)""")
    srd(a, 8, 4, 5, 2048*1024)
    srd(a, 12, 6, 7, 512*1024)
    srd(a, 16, 36, 37, 1792*1024)
    srd(a, 20, 38, 39, 2048*1024)
    srd(a, 32, 40, 41, WS_USED)
    a(f"""s_lshl_b32 s50, s47, 1
    s_mul_i32 s50, s50, {HO_TB}
    s_add_u32 s50, s50, {WS_HO}
    s_mul_i32 s51, s43, {28*1024}
    s_add_u32 s51, s51, s50
    s_mul_i32 s52, s43, {8*1024}
    s_add_u32 s52, s52, s50
    s_add_u32 s52, s52, {112*1024}         ; o frags
    s_lshl_b32 s53, s48, 7
    s_mul_i32 s54, s43, {28*16*1024}
    s_add_u32 s54, s54, s53
    s_mul_i32 s55, s43, {8*16*1024}
    s_add_u32 s55, s55, s53
    """)
    NSTEP = 36
    def issue(n):
        sl = n % D
        if n < 28: sb, sw, sr, k = 51, 54, 16, n
        else: sb, sw, sr, k = 52, 55, 12, n - 28
        a(f"s_add_u32 m0, s49, {sl*2048}\ns_add_u32 s56, s{sw}, {k*16384}")
        a(f"buffer_load_dwordx4 v{vWo}, s[{sr}:{sr+3}], s56 offen lds")
        a(f"s_add_u32 m0, s49, {sl*2048+1024}\ns_add_u32 s56, s{sw}, {k*16384+8192}")
        a(f"buffer_load_dwordx4 v{vWo}, s[{sr}:{sr+3}], s56 offen lds")
        a(f"s_add_u32 s56, s{sb}, {k*1024}")
        a(f"buffer_load_dwordx4 v[{BF+8*sl}:{BF+8*sl+3}], v{vL}, s[32:35], s56 offen")
        a(f"s_add_u32 s56, s{sb}, {k*1024+HO_TB}")
        a(f"buffer_load_dwordx4 v[{BF+8*sl+4}:{BF+8*sl+7}], v{vL}, s[32:35], s56 offen")
    def reads(n):
        sl = n % D; f = AFR + 8*(n & 1)
        for H in range(2):
            va = vA1_ if H else vA0_
            a(f"ds_read_b64_tr_b16 v[{f+4*H}:{f+4*H+1}], v{va} offset:{sl*2048}")
            a(f"ds_read_b64_tr_b16 v[{f+4*H+2}:{f+4*H+3}], v{va} offset:{sl*2048+1024}")
    for n in range(D): issue(n)
    issued = D
    a(";@mark 3")
    a(f"s_waitcnt vmcnt({4*(issued-1)})")
    a(";@mark 4")
    reads(0)
    for n in range(NSTEP):
        if n + 1 < NSTEP:
            a(f"s_waitcnt vmcnt({4*(issued-(n+2))})")
            reads(n + 1)
            a("s_waitcnt lgkmcnt(4)")
        else:
            a("s_waitcnt lgkmcnt(0)")
        sl = n % D; f = AFR + 8*(n & 1); acc = AD if n < 28 else AS
        first = n in (0, 28)
        for th in range(2):
            for H in range(2):
                d = acc + 16*(2*th + H); c = "0" if first else f"v[{d}:{d+15}]"
                a(f"v_mfma_f32_32x32x16_bf16 v[{d}:{d+15}], v[{f+4*H}:{f+4*H+3}], v[{BF+8*sl+4*th}:{BF+8*sl+4*th+3}], {c}")
        if issued < NSTEP:
            issue(issued); issued += 1
    a(";@mark 5")
    a(f"""s_barrier
    ;@mark 6
    s_mul_i32 s56, s43, {16*PST}
    v_add_u32 v{vA0_}, s56, v{vL}
    v_add_u32 v{vA1_}, {64*PST}, v{vA0_}
    s_nop 7""")
    for q in range(16): a(f"ds_write_b128 v{vA0_}, v[{AD+4*q}:{AD+4*q+3}] offset:{q*PST}")
    for q in range(16): a(f"ds_write_b128 v{vA1_}, v[{AS+4*q}:{AS+4*q+3}] offset:{q*PST}")
    a(f"""v_lshrrev_b32 v128, 7, v{vL}           ; l>>3
    s_lshl_b32 s56, s43, 4
    v_add_u32 v128, s56, v128              ; t (it=0)
    v_bfe_u32 v129, v{vL}, 4, 3            ; g
    s_lshl_b32 s57, s47, 6
    v_add_u32 v130, s57, v128
    v_lshlrev_b32 v130, 10, v130
    v_lshl_add_u32 v130, v129, 4, v130
    v_add_u32 v130, s53, v130
    buffer_load_dwordx4 v[132:135], v130, s[8:11], 0 offen
    v_add_u32 v131, 8192, v130
    buffer_load_dwordx4 v[136:139], v131, s[8:11], 0 offen
    v_lshrrev_b32 v140, 5, v128            ; th
    v_lshl_add_u32 v140, v140, 3, v129
    v_mul_u32_u24 v140, {PST}, v140
    v_and_b32 v141, 31, v128
    v_lshl_add_u32 v140, v141, 4, v140
    v_add_u32 v141, {64*PST}, v140
    s_waitcnt lgkmcnt(0)
    s_barrier
    ;@mark 7""")
    for it in range(2):
        for ai, va in enumerate((140, 141)):
            for w in range(4):
                for h in range(2):
                    dst = ai*32 + w*8 + h*4
                    a(f"ds_read_b128 v[{dst}:{dst+3}], v{va} offset:{w*16*PST + h*512 + it*128}")
        a("s_waitcnt lgkmcnt(8)")
        for r in range(8):
            a(f"v_add_f32 v{r}, v{r}, v{8+r}\nv_add_f32 v{16+r}, v{16+r}, v{24+r}")
        for r in range(8): a(f"v_add_f32 v{r}, v{r}, v{16+r}")
        for r in range(8): a(f"v_mul_f32 v{8+r}, {hx(-LOG2E)}, v{r}")
        for r in range(8): a(f"v_exp_f32 v{8+r}, v{8+r}")
        for r in range(8): a(f"v_add_f32 v{8+r}, 1.0, v{8+r}")
        for r in range(8): a(f"v_rcp_f32 v{8+r}, v{8+r}")
        for r in range(8): a(f"v_mul_f32 v{r}, v{8+r}, v{r}")
        a("s_waitcnt lgkmcnt(0)")
        for r in range(8):
            a(f"v_add_f32 v{32+r}, v{32+r}, v{40+r}\nv_add_f32 v{48+r}, v{48+r}, v{56+r}")
        for r in range(8): a(f"v_add_f32 v{32+r}, v{32+r}, v{48+r}")
        a(f"s_waitcnt vmcnt({1-it if it == 0 else 1})")
        xr = 132 + 4*it
        for j in range(4):
            a(f"v_lshlrev_b32 v{8+2*j}, 16, v{xr+j}\nv_and_b32 v{9+2*j}, 0xffff0000, v{xr+j}")
        for r in range(8): a(f"v_fma_f32 v{r}, v{r}, v{32+r}, v{8+r}")
        for j in range(4): a(f"v_cvt_pk_bf16_f32 v{144+4*it+j}, v{2*j}, v{2*j+1}")
        a(f"buffer_store_dwordx4 v[{144+4*it}:{147+4*it}], v{130+it}, s[20:23], 0 offen")
    a.label(f"{N}_end")
    a("s_endpgm")
    return a.text()

def build(path):
    hdr = open("recurrent_scan__sliding_block__glu_gated_glu__prompt.s.ref").read().split("; Override launch")[0]
    ks = [("k1_kernel", k1(), 512, NS*16384 + 512, 256), ("k2_kernel", k2(), 256, 0, 232), ("k3_kernel", k3(), 256, 128*1088, 128 + 8*K3_D + 20)]
    txt = hdr
    for n, t, blk, lds, vg in ks: txt += f"; @launch kernel={n} grid=(256,1,1) block=({blk},1,1) lds={lds}\n"
    txt += HEADER
    for n, t, blk, lds, vg in ks:
        lint.lint(t); txt += kernel_begin(n) + t
    txt += ".fill 2048, 4, 0xbf800000\n"
    txt += RODATA
    for n, t, blk, lds, vg in ks: txt += ".p2align 6\n" + kernel_desc(n, vg)
    open(path, "w").write(txt)

if __name__ == "__main__":
    build(sys.argv[1] if len(sys.argv) > 1 else "v1.s")
```
